```python
import torch

def _softmax(x, axis=-1):
    return torch.softmax(x, dim=axis)
def _gelu(x):
    return torch.nn.functional.gelu(x, approximate="tanh")
def _silu(x):
    return torch.nn.functional.silu(x)
def _sigmoid(x):
    return torch.sigmoid(x)
def _layernorm(x, axis=-1, eps=1e-5):
    m = x.mean(dim=axis, keepdim=True)
    v = x.var(dim=axis, keepdim=True, unbiased=False)
    return (x - m) / torch.sqrt(v + eps)
def _scatter_add(tgt, idx, src, axis=0):
    return tgt.clone().index_add_(axis, idx, src)
def _segment_sum(src, seg, n):
    out = torch.zeros((n,) + src.shape[1:], dtype=src.dtype)
    return out.index_add_(0, seg, src)
def _pad(x, pw):
    flat = tuple(v for pair in reversed(pw) for v in pair)
    return torch.nn.functional.pad(x, flat)

kernel_name = 'interleave_layers__sliding_block_cached__dense_activation_silu__decode'

def setup_inputs():

    _w = (lambda a: (lambda t: t.to(torch.bfloat16) if t.is_floating_point() else t)(torch.as_tensor(a)))
    def _A_setup():
        B, Sq, D = 1, 1, 448
        Hq, Hkv, Sk, Dh = 16, 8, 65536, 256
        assert Hq % Hkv == 0, (Hq, Hkv)
        return {
            "x": _w((lambda *s: torch.randn(*s, dtype=torch.bfloat16) * 0.05)(B, Sq, D)),
            "k_cache": _w((lambda *s: torch.randn(*s, dtype=torch.bfloat16) * 0.8)(B, Hkv, Sk, Dh)),
            "v_cache": _w((lambda *s: torch.randn(*s, dtype=torch.bfloat16) * 1.6)(B, Hkv, Sk, Dh)),
            "wq": _w((lambda *s: torch.randn(*s, dtype=torch.bfloat16) * 0.8)(D, Hq * Dh) * (D ** -0.5)),
            "wo": _w((lambda *s: torch.randn(*s, dtype=torch.bfloat16) * 1.6)(Hq * Dh, D) * ((Hq * Dh) ** -0.5)),
        }
    _A_in = _A_setup()

    def _B_setup():
        B, S, D, F = 1, 1, 448, 1792
        return {
            "x": _w((lambda *s: torch.randn(*s, dtype=torch.bfloat16) * 0.05)(B, S, D)),
            "w1": _w((lambda *s: torch.randn(*s, dtype=torch.bfloat16) * 0.4)(D, F) * (D ** -0.5)),
            "w2": _w((lambda *s: torch.randn(*s, dtype=torch.bfloat16) * 0.4)(F, D) * (F ** -0.5)),
        }
    _B_in = _B_setup()

    return {
        "A_x": _A_in["x"],
        "A_k_cache": _A_in["k_cache"],
        "A_v_cache": _A_in["v_cache"],
        "A_wq": _A_in["wq"],
        "A_wo": _A_in["wo"],
        "B_x": _B_in["x"],
        "B_w1": _B_in["w1"],
        "B_w2": _B_in["w2"],
    }

def reference(A_x, A_k_cache, A_v_cache, A_wq, A_wo, B_x, B_w1, B_w2):
    def _A_ref(x, k_cache, v_cache, wq, wo):
        B, Sq, D = x.shape
        Hq, Dh = 16, 256
        Hkv, Sk = k_cache.shape[1], k_cache.shape[2]
        W = min(4096, max(256, Sk // 4))
        rep = Hq // Hkv
        q = (lambda x, *d: x.permute(*d))((x @ wq).reshape(B, Sq, Hq, Dh), 0, 2, 1, 3)
        k = (lambda x, n, axis: torch.repeat_interleave(x, n, dim=axis))(k_cache[:, :, Sk - W:, :], rep, axis=1)
        v = (lambda x, n, axis: torch.repeat_interleave(x, n, dim=axis))(v_cache[:, :, Sk - W:, :], rep, axis=1)
        scores = torch.einsum("bhqd,bhkd->bhqk", q, k) * (Dh ** -0.5)
        p = _softmax(scores, axis=-1)
        o = torch.einsum("bhqk,bhkd->bhqd", p, v)
        return (lambda x, *d: x.permute(*d))(o, 0, 2, 1, 3).reshape(B, Sq, Hq * Dh) @ wo

    def _B_ref(x, w1, w2):
        h = torch.einsum("bsd,df->bsf", x, w1)
        h = _silu(h)
        out = torch.einsum("bsf,fd->bsd", h, w2)
        return out

    x = A_x
    x = x + _A_ref(_layernorm(x, axis=-1), A_k_cache, A_v_cache, A_wq, A_wo)
    x = x + _B_ref(_layernorm(x, axis=-1), B_w1, B_w2)
    x = x + _A_ref(_layernorm(x, axis=-1), A_k_cache, A_v_cache, A_wq, A_wo)
    x = x + _B_ref(_layernorm(x, axis=-1), B_w1, B_w2)
    return x
```

```python
import re
TRANS=('v_exp_f32','v_log_f32','v_rcp_f32','v_rsq_f32','v_sqrt_f32','v_sin_f32','v_cos_f32')
def regs(tok):
    tok=tok.strip()
    tok=re.sub(r'^-|^abs\(|\)$|^\||\|$','',tok)
    m=re.fullmatch(r'([vsa])(\d+)',tok)
    if m: return {(m.group(1),int(m.group(2)))}
    m=re.fullmatch(r'([vsa])\[(\d+):(\d+)\]',tok)
    if m: return {(m.group(1),i) for i in range(int(m.group(2)),int(m.group(3))+1)}
    if tok=='vcc': return {('s','vcc')}
    if tok in('vcc_lo','vcc_hi'): return {('s','vcc')}
    if tok=='m0': return {('s','m0')}
    if tok in('exec','exec_lo','exec_hi'): return {('s','exec')}
    return set()
class I:
    def __init__(s,line):
        s.line=line
        t=line.split(';')[0].strip()
        s.label=t.endswith(':'); s.empty=(t=='' or t.startswith('.'))
        s.op=''; s.w=set(); s.r=set(); s.ops=[]
        if s.label or s.empty: return
        p=t.split(None,1); s.op=p[0]; rest=p[1] if len(p)>1 else ''
        toks=[x.strip() for x in re.split(r',(?![^\[]*\])',rest)] if rest else []
        if toks:
            last=toks[-1].split(); s.mods=last[1:]; toks[-1]=last[0] if last else ''
        else: s.mods=[]
        s.ops=toks
        op=s.op
        s.mfma=op.startswith('v_mfma')
        s.valu=op.startswith('v_') and not s.mfma
        s.salu=op.startswith('s_')
        s.ds=op.startswith('ds_')
        s.vmem=op.startswith(('buffer_','global_'))
        s.dpp='_dpp' in op
        s.trans=op.replace('_e32','').replace('_e64','') in TRANS
        s.perml=op.startswith('v_permlane')
        s.rdlane=op.startswith(('v_readlane','v_readfirstlane'))
        s.lds_dma=s.vmem and 'lds' in s.mods
        R=[regs(x) for x in toks]
        U=lambda l: set().union(*l) if l else set()
        if s.mfma:
            s.w=R[0]; s.A=R[1]; s.B=R[2]; s.C=R[3]; s.r=s.A|s.B|s.C
            s.passes=2 if '4x4x4' in op else (4 if '16x16' in op else 8)
        elif s.perml:
            s.w=R[0]|R[1]; s.r=R[0]|R[1]
        elif s.valu:
            s.w=R[0]; s.r=U(R[1:])
            if op.startswith(('v_fmac','v_dot2c')) or s.dpp: s.r|=R[0]
            if op.startswith(('v_add_co','v_addc_co','v_sub_co')): s.w|=R[1]; s.r=U(R[2:])
            if op.startswith('v_cndmask') and len(toks)==3: s.r|={('s','vcc')}
        elif s.ds:
            if op.startswith('ds_read'): s.w=R[0]; s.r=U(R[1:])
            else: s.r=U(R)
        elif s.vmem:
            st='store' in op
            s.store=st
            if s.lds_dma: s.r=U(R)|{('s','m0')}
            elif st:
                s.r=U(R)
                d=R[0] if op.startswith('buffer') else R[1]
                s.data=d; s.wide=('x3' in op or 'x4' in op)
            else: s.w=R[0]; s.r=U(R[1:])
        elif s.salu:
            if op in('s_waitcnt','s_nop','s_barrier','s_endpgm','s_branch','s_setprio','s_sleep') or op.startswith(('s_cbranch','s_cmp')):
                s.r=U(R)
            else:
                s.w=R[0] if R else set(); s.r=U(R[1:])
    def states(s):
        if s.label or s.empty: return 0
        if s.op=='s_nop': return int(s.ops[0],0)+1
        return 1
def V(x): return {r for r in x if r[0] in 'va'}
def S(x): return {r for r in x if r[0]=='s'}
def need(p,c):
    n=0
    if p.valu:
        vw=V(p.w); sw=S(p.w)
        if c.mfma and vw&c.r: n=max(n,2)
        if c.dpp and len(c.ops)>1 and vw&(regs(c.ops[1])): n=max(n,2)
        if c.perml and vw&c.r: n=max(n,2)
        if c.rdlane and vw&c.r: n=max(n,1)
        if p.trans and (c.valu and not c.trans or c.mfma) and vw&c.r: n=max(n,1)
        if p.trans and c.valu and vw&c.r: n=max(n,1)
        if sw:
            if c.valu and sw&c.r: n=max(n,4 if c.rdlane else 2)
            if c.vmem and sw&c.r: n=max(n,5)
    if (p.ds or p.vmem) and c.dpp: pass
    if p.mfma:
        P={2:0,4:1,8:2}[p.passes]
        if c.mfma:
            if p.w&(c.A|c.B): n=max(n,(5,8,12)[P])
            if p.w&c.C:
                if p.w==c.C and p.passes==c.passes: n=max(n,(2,0,0)[P])
                else: n=max(n,(4,6,10)[P])
            elif p.w&c.w: n=max(n,(5,8,12)[P])
        elif (c.valu or c.ds or c.vmem):
            if p.w&(c.r|c.w): n=max(n,(5,8,12)[P])
            if c.valu and p.C&c.w: n=max(n,(1,3,7)[P])
    if p.salu and ('s','m0') in p.w and c.vmem and c.lds_dma: n=max(n,1)
    if p.vmem and getattr(p,'store',False) and not p.lds_dma and p.wide and (p.data&c.w): n=max(n,2 if c.valu or c.mfma else 1)
    return n
def fix(text):
    out=[]
    for line in text.split('\n'):
        c=I(line)
        if not(c.label or c.empty):
            req=0; dist=0
            for p in reversed(out):
                if p.label or p.empty: continue
                if p.op in('s_branch','s_endpgm'): break
                k=need(p,c)-dist
                req=max(req,k)
                dist+=p.states()
                if dist>=14: break
            if req>0:
                out.append(I(f'    s_nop {req-1}'))
        out.append(c)
    return '\n'.join(x.line for x in out)
```

```python
import sys, os
sys.path.insert(0,'bench'); sys.path.insert(0,'gen')
from asmlib import *
import hz

KB=0; KI=1056; KW=16*KI
VB=4*KW; VI=1088; VW=16*VI+128
WQB=VB+4*VW; WQW=3584
SM=WQB+4*WQW
QL=SM
PL=QL+1152
ML_L=PL+1024
FL=ML_L+64
ACC=FL+64
ACCI=1024
SMEND=ACC+6*ACCI
LDS_TOTAL=163840
assert SMEND<=LDS_TOTAL, SMEND
WO_O=0; W1_O=3584; W2_O=5376
LOC_G=0x80000; IT_S=0x30000
O_O=0; P1_O=0x10000; P2_O=0x1E000; MLG_O=0x2C000; Q1_O=0x2C800
GLB=0x400000
ROWS_O=0
F32_O=4*7168
Q0_O=F32_O+4*14336
GPOIS=Q0_O+8*2048
X0F_O=0x20000
GLB_SZ=0x28000
assert GPOIS<=32*4096 and GPOIS<=X0F_O
OOB=0x80000000
SPIN=1<<22
LOG2E=1.4426950408889634
import struct
def fbits(x): return struct.unpack('<I',struct.pack('<f',x))[0]
DPPM='row_mask:0xf bank_mask:0xf'

class G:
    def __init__(s, stamps=False, force_slow=False, altmap=False, seq=None):
        s.a=Asm(); s.stamps=stamps; s.force_slow=force_slow; s.altmap=altmap; s.uid=0
        s.seq=seq
    def lab(s,p='L'):
        s.uid+=1; return f'{p}_{s.uid}'
    def st(s,i):
        if s.stamps: s.a(f's_memrealtime s[{70+2*i}:{71+2*i}]')
    def dump(s, base_expr_sgpr, n, cond):
        if not s.stamps: return
        a=s.a; L=s.lab('Ld')
        a(f"""s_cmp_lg_u32 s28, {cond}
        s_cbranch_scc1 {L}
        s_waitcnt lgkmcnt(0)
        s_add_u32 s68, s24, 0x20000000
        s_addc_u32 s69, s25, 0
        s_lshl_b32 s30, s2, 9
        s_add_u32 s30, s30, {base_expr_sgpr}
        v_mov_b32 v250, s30""")
        for i in range(n):
            a(f"v_mov_b32 v251, s{70+2*i}\nglobal_store_dword v250, v251, s[68:69] offset:{4*i}")
        a(f"{L}:")
    def spin_tail(s, top):
        a=s.a; D=s.lab('Lok')
        a(f"""s_cbranch_vccz {D}
        s_sub_u32 s29, s29, 1
        s_cbranch_scc0 {top}
        s_mov_b32 s29, 0
        {D}:""")

    def build(s):
        a=s.a
        s.st(0)
        a("""s_load_dwordx16 s[4:19], s[0:1], 0
        s_load_dwordx4 s[20:23], s[0:1], 64
        s_load_dwordx2 s[24:25], s[0:1], 80
        s_cmp_ge_u32 s2, 256
        s_cbranch_scc1 L_end""")
        if s.altmap: a("s_lshr_b32 s26, s2, 5\ns_and_b32 s27, s2, 31")
        else: a("s_and_b32 s26, s2, 7\ns_lshr_b32 s27, s2, 3")
        a(f"""v_lshrrev_b32 v1, 6, v0
        v_and_b32 v2, 63, v0
        v_readfirstlane_b32 s28, v1
        s_mov_b32 s29, {SPIN}
        v_and_b32 v3, 15, v2
        v_lshrrev_b32 v4, 4, v2
        s_cmp_ge_u32 s28, 4
        s_cbranch_scc1 L_comm""")
        s.attention()
        a("L_comm:")
        s.comm()
        a("L_end:\ns_endpgm")
        return hz.fix(a.text())

    def loc_srd(s):
        s.a(f"""s_lshl_b32 s30, s26, 19
        s_add_u32 s56, s24, s30
        s_addc_u32 s57, s25, 0
        s_mov_b32 s58, {2*IT_S}
        s_mov_b32 s59, 0x20000""")

    def attention(s):
        a=s.a
        a(f"""s_lshl_b32 s30, s26, 16
        s_add_u32 s30, s30, 61440
        s_lshr_b32 s31, s30, 23
        s_lshl_b32 s30, s30, 9
        s_mov_b32 s34, 0x200000
        s_mov_b32 s35, 0x20000
        s_mov_b32 s42, 3670016
        s_mov_b32 s43, 0x20000
        v_lshrrev_b32 v8, 5, v2
        v_xor_b32 v5, v2, v8
        v_lshlrev_b32 v5, 4, v5
        v_lshl_add_u32 v5, v1, 10, v5
        v_lshrrev_b32 v7, 1, v2
        v_lshlrev_b32 v7, 13, v7
        v_and_b32 v9, 1, v2
        v_lshl_add_u32 v7, v9, 4, v7
        s_lshl_b32 s60, s27, 12
        s_mul_i32 s61, s28, {KW}
        s_lshl_b32 s63, s26, 10
        s_lshl_b32 s64, s27, 5
        s_add_u32 s63, s63, s64
        s_mul_i32 s64, s28, {112*8192}
        s_add_u32 s63, s63, s64
        s_mul_i32 s64, s28, {WQW}
        s_add_u32 s64, s64, {WQB}
        s_waitcnt lgkmcnt(0)
        s_add_u32 s32, s6, s30
        s_addc_u32 s33, s7, s31
        s_mov_b32 s40, s10
        s_mov_b32 s41, s11""")
        s.st(1)
        seq=s.seq or ('qkkkk'*2+'B'+'qkkkk'*2+'S'+'v'*8+'Q'+'vvv'+'K'+'oooo'+'vvvvv'+'aaaabb')
        cnt=dict(k=0,v=0,q=0,o=0,a=0,b=0); order=[]
        def band(i): return f"s_add_u32 s65, s60, {i*0x1000}\ns_and_b32 s65, s65, 0x1f000\ns_add_u32 s65, s65, {i*0x20000}"
        def after(ch):
            last=max(i for i,x in enumerate(order) if x in ch); return len(order)-1-last
        for ch in seq:
            if ch=='B': a("s_barrier"); continue
            if ch=='S':
                a(f"""s_add_u32 s36, s8, s30
                s_addc_u32 s37, s9, s31
                s_mov_b32 s38, 0x200000
                s_mov_b32 s39, 0x20000
                v_lshlrev_b32 v9, 1, v8
                v_xor_b32 v6, v2, v9
                v_lshlrev_b32 v6, 4, v6
                v_lshl_add_u32 v6, v1, 10, v6
                s_mul_i32 s62, s28, {VW}
                s_add_u32 s62, s62, {VB}
                s_mov_b32 s44, s12
                s_mov_b32 s45, s13
                s_mov_b32 s46, 3670016
                s_mov_b32 s47, 0x20000
                s_mov_b32 s48, s16
                s_mov_b32 s49, s17
                s_mov_b32 s50, 1605632
                s_mov_b32 s51, 0x20000
                s_mov_b32 s52, s18
                s_mov_b32 s53, s19
                s_mov_b32 s54, 1605632
                s_mov_b32 s55, 0x20000
                v_lshlrev_b32 v10, 4, v2
                v_mul_u32_u24 v11, 3584, v2
                s_lshl_b32 s30, s26, 9
                s_lshr_b32 s31, s27, 2
                s_lshl_b32 s31, s31, 6
                s_add_u32 s30, s30, s31
                s_and_b32 s31, s27, 3
                s_lshl_b32 s31, s31, 2
                s_add_u32 s30, s30, s31
                s_lshl_b32 s31, s28, 4
                s_add_u32 s30, s30, s31
                s_mul_i32 s66, s30, 896
                s_min_u32 s31, s27, 27
                s_mul_i32 s30, s26, 28
                s_add_u32 s30, s30, s31
                s_lshl_b32 s67, s30, 4
                s_mul_i32 s31, s28, {112*3584}
                s_add_u32 s67, s67, s31
                s_lshl_b32 s30, s30, 3
                s_lshl_b32 s31, s28, 1
                s_add_u32 s30, s30, s31
                s_mul_i32 s3, s30, 896
                v_mov_b32 v12, 0
                v_lshlrev_b32 v13, 2, v1""")
                s.loc_srd()
                a(f"""v_lshrrev_b32 v14, 1, v3
                v_mul_u32_u24 v14, {KI}, v14
                v_and_b32 v15, 1, v3
                v_lshl_add_u32 v14, v15, 9, v14
                v_xor_b32 v15, v4, v15
                v_lshl_add_u32 v14, v15, 4, v14
                v_add_u32 v14, s61, v14
                v_bfe_u32 v15, v3, 2, 1
                v_mul_u32_u24 v15, 576, v15
                v_lshl_add_u32 v15, v4, 4, v15
                v_and_b32 v16, 1, v4
                v_lshlrev_b32 v17, 6, v16
                v_lshl_add_u32 v17, v1, 7, v17
                v_lshrrev_b32 v18, 1, v4
                v_lshl_add_u32 v17, v18, 5, v17
                v_lshl_add_u32 v17, v3, 1, v17
                v_lshlrev_b32 v18, 4, v16
                v_lshl_add_u32 v19, v1, 2, v18
                v_bfe_u32 v20, v3, 2, 1
                v_lshlrev_b32 v20, 6, v20
                v_lshl_add_u32 v20, v4, 7, v20
                v_mul_u32_u24 v21, {VW}, v4
                v_lshrrev_b32 v22, 3, v3
                v_mul_u32_u24 v22, {VI}, v22
                v_add_u32 v21, v21, v22
                v_bfe_u32 v22, v3, 2, 1
                v_lshl_add_u32 v21, v22, 9, v21
                v_and_b32 v23, 3, v3
                v_lshl_add_u32 v21, v23, 3, v21
                v_lshl_add_u32 v21, v1, 7, v21
                v_add_u32 v21, {VB}, v21
                v_lshlrev_b32 v23, 5, v22
                v_sub_u32 v22, v21, v23
                v_add_u32 v21, v21, v23
                v_lshlrev_b32 v23, 4, v4
                v_lshl_add_u32 v23, v1, 2, v23
                v_lshrrev_b32 v24, 2, v3
                v_add_u32 v23, v23, v24
                v_lshlrev_b32 v23, 11, v23
                v_and_b32 v24, 3, v3
                v_lshl_add_u32 v23, v24, 4, v23
                s_lshl_b32 s30, s27, 6
                v_add_u32 v23, s30, v23
                v_mov_b32 v25, {OOB}
                v_cmp_gt_u32 vcc, 32, v2
                v_cndmask_b32 v23, v25, v23, vcc
                v_lshlrev_b32 v24, 10, v4
                v_lshl_add_u32 v24, v1, 3, v24
                s_lshl_b32 s30, s27, 5
                s_add_u32 s30, s30, {MLG_O}
                v_add_u32 v24, s30, v24
                v_and_b32 v26, 47, v2
                v_cmp_eq_u32 vcc, 0, v26
                v_cndmask_b32 v24, v25, v24, vcc
                v_add_u32 v13, {FL}, v13
                v_add_u32 v15, {QL}, v15
                v_add_u32 v17, {PL}, v17
                v_add_u32 v18, {ML_L}, v18
                v_add_u32 v19, {ML_L}, v19
                v_add_u32 v20, {PL}, v20
                v_mov_b32 v26, {FL}""")
                for r in range(208,224): a(f"v_mov_b32 v{r}, 0")
                continue
            if ch=='Q':
                a(f"s_waitcnt vmcnt({after('q')})\nds_write_b32 v13, v12 offset:16"); s.st(2); continue
            if ch=='K':
                a(f"s_waitcnt vmcnt({after('k')})"); s.st(3)
                for T in range(2):
                    for t in range(8):
                        r=32+(T*8+t)*4
                        a(f"ds_read_b128 v[{r}:{r+3}], v14 offset:{T*8*KI+t*64}")
                a("s_waitcnt lgkmcnt(0)"); continue
            i=cnt[ch]; cnt[ch]+=1; order.append(ch)
            if ch=='k': a(band(i)+f"\ns_add_u32 m0, s61, {i*KI}\nbuffer_load_dwordx4 v5, s[32:35], s65 offen nt lds")
            elif ch=='v': a(band(i)+f"\ns_add_u32 m0, s62, {i*VI}\nbuffer_load_dwordx4 v6, s[36:39], s65 offen nt lds")
            elif ch=='q': a(f"s_add_u32 m0, s64, {i*896}\ns_mov_b32 exec_hi, 0xffffff\ns_add_u32 s65, s63, {i*28*8192}\nbuffer_load_dwordx4 v7, s[40:43], s65 offen nt lds\ns_mov_b32 exec_hi, -1")
            elif ch=='o': a(f"s_add_u32 m0, s61, {WO_O}\ns_mov_b32 exec_hi, 0xffffff\nbuffer_load_dwordx4 v10, s[44:47], s66 offen offset:{i*896} nt lds\ns_mov_b32 exec_hi, -1")
            elif ch=='a': a(f"s_add_u32 m0, s61, {W1_O+i*448}\ns_mov_b64 exec, 0xfffffff\ns_add_u32 s65, s67, {i*28*3584}\nbuffer_load_dwordx4 v11, s[48:51], s65 offen nt lds\ns_mov_b64 exec, -1")
            elif ch=='b': a(f"s_add_u32 m0, s61, {W2_O}\ns_mov_b32 exec_hi, 0xffffff\nbuffer_load_dwordx4 v10, s[52:55], s3 offen offset:{i*896} nt lds\ns_mov_b32 exec_hi, -1")
        s.nlate=after('vo')
        s.st(4)
        pm=0
        for l in range(64):
            if (l&15)<8 and (l&3)==(l>>4): pm|=1<<l
        a(f"""s_mov_b32 s44, {pm&0xffffffff}
        s_mov_b32 s45, {pm>>32}
        s_mov_b32 s46, 0
        s_mov_b32 s47, {fbits(LOG2E/16):#x}
        s_mov_b32 s48, 0
        s_mov_b32 s50, -1
        s_mov_b32 s51, 0""")
        a("L_att_loop:")
        T=s.lab('Lq')
        a(f"{T}:\nds_read_b32 v27, v26")
        for t in range(8): a(f"ds_read_b128 v[{160+4*t}:{163+4*t}], v15 offset:{t*64}")
        a("s_waitcnt lgkmcnt(8)\nv_cmp_eq_u32 vcc, -1, v27")
        D=s.lab('Lok')
        a(f"""s_cbranch_vccz {D}
        s_waitcnt lgkmcnt(0)
        s_sub_u32 s29, s29, 1
        s_cbranch_scc0 {T}
        s_mov_b32 s29, 0
        {D}:""")
        s.st(5)
        a("v_readfirstlane_b32 s49, v27")
        for t in range(8):
            a(f"s_waitcnt lgkmcnt({7-t})")
            for Tt in range(2):
                d=192+4*Tt; kr=32+(Tt*8+t)*4
                a(f"v_mfma_f32_16x16x32_bf16 v[{d}:{d+3}], v[{160+4*t}:{163+4*t}], v[{kr}:{kr+3}], {'0' if t==0 else f'v[{d}:{d+3}]'}")
        a(f"""v_cndmask_b32 v27, v196, v192, s[50:51]
        v_max_f32_dpp v28, v27, v27 row_ror:8 {DPPM}
        v_max_f32_dpp v28, v28, v28 row_ror:4 {DPPM}
        v_max_f32_dpp v28, v28, v28 row_ror:2 {DPPM}
        v_max_f32_dpp v28, v28, v28 row_ror:1 {DPPM}
        v_mov_b32 v29, v28
        v_permlane32_swap_b32 v28, v29
        v_max_f32 v28, v28, v29
        v_mul_f32 v28, s47, v28
        v_fma_f32 v27, v27, s47, -v28
        v_exp_f32 v27, v27
        v_cvt_pk_bf16_f32 v29, v27, v27
        ds_write_b16 v17, v29
        ds_write_b32 v19, v28""")
        s.st(6)
        Lv=s.lab('Lnov'); T=s.lab('Lv')
        a(f"""s_cmp_lg_u32 s46, 0
        s_cbranch_scc1 {Lv}
        s_waitcnt vmcnt({s.nlate})
        ds_write_b32 v13, v12 offset:32""")
        s.st(7)
        a(f"""{T}:
        ds_read_b128 v[200:203], v26 offset:32
        s_waitcnt lgkmcnt(0)
        v_max3_u32 v200, v200, v201, v202
        v_max_u32 v200, v200, v203
        v_cmp_eq_u32 vcc, -1, v200""")
        s.spin_tail(T)
        for sx in range(4):
            for tt in range(4):
                for u in range(2):
                    r=96+(sx*4+tt)*4+2*u
                    a(f"ds_read_b64_tr_b16 v[{r}:{r+1}], {'v21' if tt%2==0 else 'v22'} offset:{(4*sx+2*u)*VI+tt*32}")
        a(f"{Lv}:")
        T=s.lab('Lp')
        a(f"""{T}:
        ds_read_b128 v[200:203], v18
        s_mov_b64 exec, s[44:45]""")
        for sx in range(4): a(f"ds_read_b128 v[{208+4*sx}:{211+4*sx}], v20 offset:{sx*16}")
        a(f"""s_mov_b64 exec, -1
        s_waitcnt lgkmcnt(0)
        v_max3_u32 v204, v200, v201, v202
        v_max_u32 v204, v204, v203
        v_cmp_eq_u32 vcc, -1, v204""")
        s.spin_tail(T)
        s.st(8)
        side=[f"v_add_f32_dpp v29, v27, v27 row_ror:8 {DPPM}",
              "v_max3_f32 v204, v200, v201, v202",
              "v_max_f32 v204, v204, v203",
              f"v_add_f32_dpp v29, v29, v29 row_ror:4 {DPPM}",
              "v_sub_f32 v28, v28, v204",
              "v_sub_f32 v200, v200, v204",
              f"v_add_f32_dpp v29, v29, v29 row_ror:2 {DPPM}",
              "v_exp_f32 v28, v28",
              "v_sub_f32 v201, v201, v204",
              f"v_add_f32_dpp v29, v29, v29 row_ror:1 {DPPM}",
              "v_sub_f32 v202, v202, v204",
              "v_mov_b32 v30, v29",
              "v_sub_f32 v203, v203, v204",
              "v_exp_f32 v200, v200",
              "v_permlane32_swap_b32 v29, v30",
              "v_add_f32 v29, v29, v30",
              "v_mul_f32 v205, v29, v28",
              "STORE_ML",
              "v_exp_f32 v201, v201",
              "v_exp_f32 v202, v202",
              "v_exp_f32 v203, v203"]
        def emit_pv(sc):
            si=0; n=0
            for tt in range(4):
                for sx in range(4):
                    d=224+4*tt; vr=96+(sx*4+tt)*4
                    a(f"v_mfma_f32_16x16x32_bf16 v[{d}:{d+3}], v[{208+4*sx}:{211+4*sx}], v[{vr}:{vr+3}], {'0' if sx==0 else f'v[{d}:{d+3}]'}")
                    n+=1
                    k=2
                    while k>0 and si<len(side):
                        x=side[si]; si+=1; k-=1
                        if x=="STORE_ML": a(f"buffer_store_dwordx2 v[204:205], v24, s[56:59], s48 offen{sc}")
                        else: a(x)
                    if n>=13 and si>=len(side):
                        t2=n-13
                        if t2<2:
                            d2=224+4*t2
                            a(f"v_mul_f32 v{240+t2}, v200, v{d2}\nv_fmac_f32 v{240+t2}, v201, v{d2+1}")
                        elif t2<4:
                            d2=224+4*(t2-2)
                            a(f"v_fmac_f32 v{240+t2-2}, v202, v{d2+2}\nv_fmac_f32 v{240+t2-2}, v203, v{d2+3}")
            for t2 in (2,3):
                d2=224+4*t2
                a(f"v_mul_f32 v{240+t2}, v200, v{d2}\nv_fmac_f32 v{240+t2}, v201, v{d2+1}\nv_fmac_f32 v{240+t2}, v202, v{d2+2}\nv_fmac_f32 v{240+t2}, v203, v{d2+3}")
            a(f"buffer_store_dwordx4 v[240:243], v23, s[56:59], s48 offen{sc}")
        Ls=s.lab('Lslow'); Lj=s.lab('Lj')
        a(f"s_cmp_lg_u32 s49, 1\ns_cbranch_scc1 {Ls}")
        emit_pv('')
        a(f"{Lj}:")
        s.st(9)
        a(f"""s_cmp_lg_u32 s46, 0
        s_cbranch_scc1 L_att_done
        s_waitcnt vmcnt(2)
        ds_write_b32 v13, v12 offset:48""")
        s.st(10)
        s.dump(0,11,0)
        a(f"""s_mov_b32 s46, 1
        s_mov_b32 s48, {IT_S}
        v_add_u32 v26, 4, v26
        v_add_u32 v17, 512, v17
        v_add_u32 v20, 512, v20
        v_add_u32 v18, 32, v18
        v_add_u32 v19, 32, v19
        s_branch L_att_loop
        L_att_done:""")
        s.dump(64,11,0)
        a("s_endpgm")
        a(f"{Ls}:")
        emit_pv(' sc1')
        a(f"s_branch {Lj}")

    def xfront(s, B, inst_off_s, rowoff_s):
        a=s.a; T=s.lab('Lx')
        a(f"{T}:\ns_mov_b64 exec, s[44:45]")
        for i in range(4):
            a(f"buffer_load_dwordx4 v[{48+4*i}:{51+4*i}], {'v20' if i<3 else 'v21'}, s[64:67], {rowoff_s} offen offset:{64*i} sc1")
        a("s_mov_b64 exec, -1\ns_waitcnt vmcnt(0)")
        chk=["v_max3_u32 v40, v48, v49, v50","v_max3_u32 v41, v51, v52, v53","v_max3_u32 v40, v40, v54, v55","v_max3_u32 v41, v41, v56, v57",
             "v_max3_u32 v40, v40, v58, v59","v_max3_u32 v41, v41, v60, v61","v_max3_u32 v40, v40, v62, v63","v_max_u32 v40, v40, v41"]
        for i in range(4):
            a(f"v_mfma_f32_16x16x32_bf16 v[128:131], v[{48+4*i}:{51+4*i}], v[{48+4*i}:{51+4*i}], {'0' if i==0 else 'v[128:131]'}")
            a(chk[2*i]); a(chk[2*i+1])
        a("v_cmp_eq_u32 vcc, -1, v40")
        s.spin_tail(T)
        side=[[],[],["v_add_f32 v40, v128, v129","v_add_f32 v41, v130, v131"],["v_add_f32 v40, v40, v41"]]
        for i in range(4):
            a(f"v_mfma_f32_16x16x32_bf16 v[132:135], v[{48+4*i}:{51+4*i}], v[{B+4*i}:{B+3+4*i}], {'0' if i==0 else 'v[132:135]'}")
            for x in side[i]: a(x)
        a(f"""v_add_f32_dpp v40, v40, v40 quad_perm:[1,0,3,2] {DPPM}
        v_add_f32_dpp v40, v40, v40 quad_perm:[2,3,0,1] {DPPM}
        v_add_f32_dpp v40, v40, v40 row_half_mirror {DPPM}
        v_add_f32 v42, v132, v133
        v_add_f32 v43, v134, v135
        ds_write_b32 v31, v40
        v_add_f32 v42, v42, v43
        ds_write_b32 v30, v42""")
    def xsum(s, rd):
        a=s.a; T=s.lab('Ls')
        a(f"""{T}:
        ds_read_b128 v[40:43], {rd}
        ds_read_b128 v[44:47], {rd} offset:16
        s_waitcnt lgkmcnt(1)
        v_add_f32 v40, v40, v41
        v_add_f32 v42, v42, v43
        s_waitcnt lgkmcnt(0)
        v_add_f32 v44, v44, v45
        v_add_f32 v46, v46, v47
        v_add_f32 v40, v40, v42
        v_add_f32 v44, v44, v46
        v_add_f32 v40, v40, v44
        v_cmp_eq_u32 vcc, -1, v40""")
        s.spin_tail(T)
    def xnorm(s, cs):
        s.a(f"""v_mul_f32_dpp v42, v40, v34 row_newbcast:9 {DPPM}
        v_mul_f32_dpp v43, v40, v34 row_newbcast:8 {DPPM}
        v_fma_f32 v43, -v42, v42, v43
        v_fma_f32 v41, -v42, {cs}, v40
        v_max_f32 v43, 0, v43
        v_add_f32 v43, 0x3727c5ac, v43
        v_rsq_f32 v43, v43
        v_mul_f32 v41, v41, v43""")
    def adv_acc(s):
        s.a(f"v_add_u32 v30, {ACCI}, v30\nv_add_u32 v31, {ACCI}, v31\nv_add_u32 v32, {ACCI}, v32\nv_add_u32 v33, {ACCI}, v33")
    def colsum(s, B, rd, dst):
        a=s.a
        for i in range(4):
            a(f"v_mfma_f32_16x16x32_bf16 v[132:135], v[{136+4*(i//3)}:{139+4*(i//3)}], v[{B+4*i}:{B+3+4*i}], {'0' if i==0 else 'v[132:135]'}")
        a("v_mov_b32 v40, 0\nv_mul_f32 v42, 0.5, v132\nds_write_b32 v31, v40\nds_write_b32 v30, v42")
        s.xsum(rd)
        a(f"v_mov_b32 {dst}, v40")
        s.adv_acc()
    def reduce(s, poff_s, second, foff_s, final=False):
        a=s.a; T=s.lab('Lr')
        a(f"{T}:")
        if not final:
            a(f"""buffer_load_dwordx4 v[40:43], v13, s[56:59], {poff_s} offen sc1
            buffer_load_dwordx4 v[44:47], {second}, s[56:59], {poff_s} offen offset:1024 sc1
            buffer_load_dwordx4 v[128:131], v22, s[60:63], {foff_s} offen sc1
            s_waitcnt vmcnt(1)""")
            for i in range(4): a(f"v_add_f32 v{40+i}, v{40+i}, v{44+i}")
            a("s_waitcnt vmcnt(0)")
            for i in range(4): a(f"v_add_f32 v{40+i}, v{40+i}, v{128+i}")
        else:
            a(f"buffer_load_dwordx4 v[40:43], v22, s[60:63], {foff_s} offen sc1\ns_waitcnt vmcnt(0)")
        a("v_max3_u32 v44, v40, v41, v42\nv_max_u32 v44, v44, v43\nv_cmp_eq_u32 vcc, -1, v44")
        s.spin_tail(T)
        for r in (8,4,2,1):
            for i in range(4): a(f"v_add_f32_dpp v{40+i}, v{40+i}, v{40+i} row_ror:{r} {DPPM}")
        a("v_cvt_pk_bf16_f32 v44, v40, v41\nv_cvt_pk_bf16_f32 v45, v42, v43")

    def comm(s):
        a=s.a
        a(f"""s_sub_u32 s28, s28, 4
        v_and_b32 v1, 3, v1
        v_mov_b32 v40, -1
        v_mov_b32 v41, -1
        v_mov_b32 v42, -1
        v_mov_b32 v43, -1
        v_and_b32 v5, 255, v0
        v_lshlrev_b32 v5, 4, v5
        v_add_u32 v6, {SM}, v5""")
        n=(SMEND-SM+4095)//4096
        for i in range(n): a(f"ds_write_b128 v6, v[40:43] offset:{min(i*4096,SMEND-SM-4096)}")
        a(f"""v_lshlrev_b32 v12, 4, v2
        s_mul_i32 s31, s27, 12288
        s_mul_i32 s30, s28, 3072
        s_add_u32 s46, s31, s30
        s_waitcnt lgkmcnt(0)""")
        s.loc_srd()
        a(f"""s_add_u32 s60, s24, {GLB}
        s_addc_u32 s61, s25, 0
        s_mov_b32 s62, {GLB_SZ}
        s_mov_b32 s63, 0x20000
        s_mov_b32 s64, s4
        s_mov_b32 s65, s5
        s_mov_b32 s66, 896
        s_mov_b32 s67, 0x20000
        s_mov_b32 s52, s22
        s_mov_b32 s53, s23
        s_mov_b32 s54, 256
        s_mov_b32 s55, 0x20000""")
        Ln=s.lab('Lnl')
        a(f"""s_lshl_b32 s30, s26, 2
        s_add_u32 s47, s30, s28
        s_cmp_lg_u32 s27, 0
        s_cbranch_scc1 {Ln}
        s_lshl_b32 s30, s47, 12""")
        for i in range(4): a(f"buffer_store_dwordx4 v[40:43], v12, s[60:63], s30 offen offset:{i*1024} sc1")
        a(f"{Ln}:")
        for i in range(3): a(f"buffer_store_dwordx4 v[40:43], v12, s[56:59], s46 offen offset:{i*1024}")
        a("s_barrier")
        s.st(1)
        a(f"""v_mov_b32 v25, {OOB}
        v_lshlrev_b32 v13, 6, v3
        v_lshl_add_u32 v13, v4, 4, v13
        s_lshl_b32 s30, s27, 9
        v_add_u32 v22, s30, v13
        s_lshl_b32 s30, s27, 11
        v_add_u32 v13, s30, v13
        v_cmp_gt_u32 vcc, 12, v3
        v_cndmask_b32 v14, v25, v13, vcc
        v_cmp_gt_u32 vcc, 8, v3
        s_cmp_eq_u32 s26, 0
        s_cselect_b64 s[30:31], -1, 0
        s_and_b64 vcc, vcc, s[30:31]
        v_cndmask_b32 v22, v25, v22, vcc
        v_lshlrev_b32 v15, 5, v3
        v_lshl_add_u32 v15, v4, 3, v15
        s_lshr_b32 s30, s27, 4
        s_lshl_b32 s30, s30, 10
        s_add_u32 s30, s30, {MLG_O}
        v_add_u32 v15, s30, v15
        v_lshl_add_u32 v16, v1, 3, v4
        v_lshlrev_b32 v16, 11, v16
        v_lshl_add_u32 v16, v3, 2, v16
        s_lshl_b32 s30, s27, 6
        v_add_u32 v16, s30, v16
        v_add_u32 v17, 8192, v16
        v_cmp_gt_u32 vcc, 3, v1
        v_cndmask_b32 v17, v25, v17, vcc
        v_lshrrev_b32 v18, 3, v2
        v_lshl_add_u32 v18, v1, 3, v18
        v_cmp_gt_u32 vcc, 28, v18
        v_lshlrev_b32 v18, 11, v18
        v_and_b32 v19, 7, v2
        v_lshl_add_u32 v18, v19, 3, v18
        v_add_u32 v18, s30, v18
        v_cndmask_b32 v18, v25, v18, vcc
        s_mul_i32 s30, s26, 896
        s_lshl_b32 s31, s27, 5
        s_add_u32 s30, s30, s31
        v_lshl_add_u32 v19, v4, 3, s30
        v_lshl_add_u32 v27, v4, 3, s31
        s_lshl_b32 s30, s27, 9
        s_lshl_b32 s31, s26, 6
        s_add_u32 s30, s30, s31
        v_lshl_add_u32 v23, v4, 4, s30
        v_cmp_eq_u32 vcc, 0, v3
        v_cndmask_b32 v19, v25, v19, vcc
        v_cndmask_b32 v23, v25, v23, vcc
        v_cndmask_b32 v27, v25, v27, vcc
        v_mul_u32_u24 v20, 896, v3
        v_lshl_add_u32 v20, v4, 4, v20
        s_mul_i32 s30, s28, 224
        v_add_u32 v20, s30, v20
        v_cmp_gt_u32 vcc, 2, v4
        v_cndmask_b32 v21, v25, v20, vcc
        v_and_b32 v24, 1, v4
        v_lshlrev_b32 v24, 4, v24
        v_lshl_add_u32 v24, v3, 1, v24
        s_lshl_b32 s30, s27, 5
        v_add_u32 v24, s30, v24
        v_and_b32 v26, 41, v2
        v_cmp_eq_u32 vcc, 0, v26
        v_cndmask_b32 v24, v25, v24, vcc
        v_lshrrev_b32 v26, 5, v2
        v_lshl_add_u32 v26, v26, 6, v12
        v_add_u32 v26, {QL}, v26
        v_mov_b32 v28, {FL}
        v_and_b32 v29, 31, v2
        v_lshlrev_b32 v29, 2, v29
        v_and_b32 v35, 1, v4
        v_lshl_add_u32 v35, v1, 1, v35
        v_lshlrev_b32 v35, 2, v35
        v_lshl_add_u32 v30, v3, 5, v35
        v_lshlrev_b32 v36, 2, v2
        v_add_u32 v36, 768, v36
        v_cmp_gt_u32 vcc, 32, v2
        v_cndmask_b32 v30, v36, v30, vcc
        v_lshrrev_b32 v31, 3, v3
        v_lshl_add_u32 v31, v31, 5, v35
        v_add_u32 v31, 512, v31
        v_and_b32 v37, 39, v2
        v_cmp_eq_u32 vcc, 0, v37
        v_cndmask_b32 v31, v36, v31, vcc
        v_and_b32 v32, 7, v2
        v_and_b32 v33, 1, v4
        v_lshl_add_u32 v33, v33, 3, v32
        v_and_b32 v37, 1, v2
        v_add_u32 v37, 16, v37
        v_cmp_gt_u32 vcc, 8, v3
        v_cndmask_b32 v32, v37, v32, vcc
        v_cndmask_b32 v33, v37, v33, vcc
        v_lshlrev_b32 v32, 5, v32
        v_lshlrev_b32 v33, 5, v33
        v_add_u32 v30, {ACC}, v30
        v_add_u32 v31, {ACC}, v31
        v_add_u32 v32, {ACC}, v32
        v_add_u32 v33, {ACC}, v33
        v_mov_b32 v34, {fbits(1.0/448):#x}
        s_mov_b32 s44, 0x00ff00ff
        s_mov_b32 s45, 0x00ff00ff
        s_getreg_b32 s51, hwreg(HW_REG_XCC_ID, 0, 4)""")
        a(f"""v_mov_b32 v36, 0x3f803f80
        v_cmp_eq_u32 vcc, 8, v3
        v_cndmask_b32 v48, 0, v36, vcc""")
        for r in range(49,60): a(f"v_mov_b32 v{r}, v48")
        a("v_cmp_gt_u32 vcc, 2, v4\nv_cndmask_b32 v60, 0, v48, vcc\nv_cndmask_b32 v140, 0, v36, vcc")
        for r in range(61,64): a(f"v_mov_b32 v{r}, v60")
        for r in range(136,140): a(f"v_mov_b32 v{r}, v36")
        for r in range(141,144): a(f"v_mov_b32 v{r}, v140")
        a(f"""buffer_load_dwordx2 v[44:45], v27, s[64:67], 0 offen
        s_waitcnt vmcnt(0)
        v_lshlrev_b32 v40, 16, v44
        v_and_b32 v41, 0xffff0000, v44
        v_lshlrev_b32 v42, 16, v45
        v_and_b32 v43, 0xffff0000, v45
        s_mov_b32 s30, {X0F_O}""")
        Ln=s.lab('Lno')
        a(f"""s_cmp_lg_u32 s28, 0
        s_cbranch_scc1 {Ln}
        s_cmp_ge_u32 s27, 28
        s_cbranch_scc1 {Ln}
        buffer_store_dwordx4 v[40:43], v22, s[60:63], s30 offen sc1
        {Ln}:""")
        Ln=s.lab('Lnf')
        a(f"""s_cmp_lg_u32 s27, 0
        s_cbranch_scc1 {Ln}
        s_lshl_b32 s30, s47, 2
        v_mov_b32 v44, 1
        v_cmp_eq_u32 vcc, 0, v2
        v_cndmask_b32 v45, v25, v2, vcc
        buffer_store_dword v44, v45, s[52:55], s30 offen sc1
        {Ln}:""")
        s.st(2)
        T=s.lab('Lfl')
        a(f"""{T}:
        buffer_load_dword v44, v29, s[52:55], 0 offen sc1
        s_waitcnt vmcnt(0)
        v_cmp_eq_u32 vcc, 0, v44""")
        s.spin_tail(T)
        s.st(3)
        T=s.lab('Lwq')
        a(f"""v_lshl_add_u32 v36, v1, 2, v28
        {T}:
        ds_read_b32 v44, v36 offset:16
        s_waitcnt lgkmcnt(0)
        v_cmp_eq_u32 vcc, -1, v44""")
        s.spin_tail(T)
        s.st(4)
        a(f"""v_lshlrev_b32 v36, 8, v4
        v_lshl_add_u32 v36, v3, 3, v36
        s_mul_i32 s30, s28, {WQW}
        s_add_u32 s30, s30, {WQB}
        v_add_u32 v36, s30, v36""")
        for i in range(4):
            for u in range(2):
                a(f"ds_read_b64_tr_b16 v[{64+4*i+2*u}:{65+4*i+2*u}], v36 offset:{i*1024+u*128}")
        a("s_waitcnt lgkmcnt(0)\nv_cmp_gt_u32 vcc, 2, v4")
        for r in range(76,80): a(f"v_cndmask_b32 v{r}, 0, v{r}, vcc")
        s.colsum(64,'v33','v38')
        a(f"""s_mov_b32 s46, 0
        s_mov_b32 s48, 0
        s_mov_b32 s49, 0
        s_mov_b32 s50, {X0F_O}
        s_lshl_b32 s30, s26, 11
        s_add_u32 s43, s30, {Q0_O}""")
        s.xfront(64,None,'0'); s.xsum('v33'); s.xnorm('v38'); s.adv_acc()
        Ln=s.lab('Lq0')
        a(f"""v_mov_b32_dpp v42, v41 quad_perm:[1,0,3,2] {DPPM}
        v_cvt_pk_bf16_f32 v42, v41, v42
        s_cmp_lg_u32 s28, 0
        s_cbranch_scc1 {Ln}
        buffer_store_dword v42, v24, s[60:63], s43 offen sc1
        v_mov_b32 v44, s51
        s_lshl_b32 s30, s27, 2
        s_add_u32 s30, s30, s43
        v_cmp_eq_u32 vcc, 0, v2
        v_cndmask_b32 v45, v25, v2, vcc
        buffer_store_dword v44, v45, s[60:63], s30 offen offset:1024 sc1
        {Ln}:
        s_mov_b32 s64, s60
        s_mov_b32 s65, s61
        s_mov_b32 s66, {4*7168}""")
        s.st(5)
        T=s.lab('Lq0p')
        a(f"""{T}:
        buffer_load_dwordx4 v[40:43], v12, s[60:63], s43 offen sc1
        buffer_load_dword v44, v29, s[60:63], s43 offen offset:1024 sc1
        s_waitcnt vmcnt(0)
        v_max3_u32 v45, v40, v41, v42
        v_max3_u32 v45, v45, v43, v44
        v_cmp_eq_u32 vcc, -1, v45""")
        s.spin_tail(T)
        s.st(6)
        a("ds_write_b128 v26, v[40:43]\nv_cmp_ne_u32 vcc, s51, v44")
        if s.force_slow: a("s_branch L_slow_entry")
        else: a("s_cbranch_vccnz L_slow_entry")
        a("v_mov_b32 v39, 1\nds_write_b32 v28, v39")
        s.dump(128,7,0)
        s.comm_loop('', 'f')
        a(f"""L_slow_entry:
        v_mov_b32 v40, -1
        v_mov_b32 v41, -1
        v_mov_b32 v42, -1
        v_mov_b32 v43, -1
        s_mul_i32 s31, s27, 12288
        s_mul_i32 s30, s28, 3072
        s_add_u32 s30, s31, s30""")
        for i in range(3): a(f"buffer_store_dwordx4 v[40:43], v12, s[56:59], s30 offen offset:{i*1024} sc1")
        T=s.lab('Lr2')
        a(f"""s_waitcnt vmcnt(0)
        s_lshl_b32 s30, s27, 2
        s_add_u32 s30, s30, s28
        s_lshl_b32 s30, s30, 2
        s_add_u32 s30, s30, s43
        v_mov_b32 v44, 0
        v_cmp_eq_u32 vcc, 0, v2
        v_cndmask_b32 v45, v25, v2, vcc
        buffer_store_dword v44, v45, s[60:63], s30 offen offset:1280 sc1
        v_lshlrev_b32 v46, 3, v2
        {T}:
        buffer_load_dwordx2 v[44:45], v46, s[60:63], s43 offen offset:1280 sc1
        s_waitcnt vmcnt(0)
        v_max_u32 v44, v44, v45
        v_cmp_eq_u32 vcc, -1, v44""")
        s.spin_tail(T)
        a("v_mov_b32 v39, 2\nds_write_b32 v28, v39")
        s.comm_loop(' sc1','s')

    def comm_loop(s, sc, tag):
        a=s.a
        T=s.lab('Lwv')
        a(f"""{T}:
        ds_read_b128 v[40:43], v28 offset:32
        s_waitcnt lgkmcnt(0)
        v_max3_u32 v40, v40, v41, v42
        v_max_u32 v40, v40, v43
        v_cmp_eq_u32 vcc, -1, v40""")
        s.spin_tail(T)
        a(f"""v_lshrrev_b32 v36, 2, v3
        v_mul_u32_u24 v36, {KW}, v36
        v_and_b32 v37, 3, v3
        v_lshl_add_u32 v36, v37, 3, v36
        v_lshl_add_u32 v36, v4, 5, v36
        v_lshl_add_u32 v36, v1, 8, v36""")
        for grp in range(2):
            for b in range(4):
                r=96+(grp*4+b)*2
                a(f"ds_read_b64_tr_b16 v[{r}:{r+1}], v36 offset:{WO_O+b*896+grp*128}")
        a(f"L_loop_{tag}:")
        s.st(0)
        T=s.lab('Lml')
        a(f"""{T}:
        buffer_load_dwordx2 v[40:41], v15, s[56:59], s48 offen sc1
        buffer_load_dwordx2 v[42:43], v15, s[56:59], s48 offen offset:512 sc1
        s_waitcnt vmcnt(0)
        v_max3_u32 v44, v40, v41, v42
        v_max_u32 v44, v44, v43
        v_cmp_eq_u32 vcc, -1, v44""")
        s.spin_tail(T)
        s.st(1)
        T=s.lab('Lo')
        ld_o=f"""buffer_load_dwordx4 v[128:131], v13, s[56:59], s48 offen sc1
        buffer_load_dwordx4 v[132:135], v13, s[56:59], s48 offen offset:1024 sc1"""
        a(ld_o)
        a(f"""v_max_f32 v44, v40, v42
        v_max_f32_dpp v44, v44, v44 row_ror:8 {DPPM}
        v_max_f32_dpp v44, v44, v44 row_ror:4 {DPPM}
        v_max_f32_dpp v44, v44, v44 row_ror:2 {DPPM}
        v_max_f32_dpp v44, v44, v44 row_ror:1 {DPPM}
        v_sub_f32 v40, v40, v44
        v_sub_f32 v42, v42, v44
        v_exp_f32 v40, v40
        v_exp_f32 v42, v42
        v_mul_f32 v44, v40, v41
        v_fmac_f32 v44, v42, v43
        v_add_f32_dpp v44, v44, v44 row_ror:8 {DPPM}
        v_add_f32_dpp v44, v44, v44 row_ror:4 {DPPM}
        v_add_f32_dpp v44, v44, v44 row_ror:2 {DPPM}
        v_add_f32_dpp v44, v44, v44 row_ror:1 {DPPM}
        v_mov_b32 v45, v44
        v_permlane16_swap_b32 v44, v45
        v_add_f32 v44, v44, v45
        v_mov_b32 v45, v44
        v_permlane32_swap_b32 v44, v45
        v_add_f32 v44, v44, v45
        v_rcp_f32 v44, v44
        v_mul_f32 v40, v40, v44
        v_mul_f32 v42, v42, v44""")
        D=s.lab('Lok')
        a(f"""{T}:
        s_waitcnt vmcnt(0)
        v_max3_u32 v44, v128, v129, v130
        v_max3_u32 v45, v131, v132, v133
        v_max3_u32 v44, v44, v134, v135
        v_max_u32 v44, v44, v45
        v_cmp_eq_u32 vcc, -1, v44
        s_cbranch_vccz {D}
        {ld_o}
        s_sub_u32 s29, s29, 1
        s_cbranch_scc0 {T}
        s_mov_b32 s29, 0
        s_waitcnt vmcnt(0)
        {D}:""")
        s.st(2)
        for i in range(4): a(f"v_mul_f32 v{128+i}, v40, v{128+i}")
        for i in range(4): a(f"v_fmac_f32 v{128+i}, v42, v{132+i}")
        for r in (8,4,2,1):
            for i in range(4): a(f"v_add_f32_dpp v{128+i}, v{128+i}, v{128+i} row_ror:{r} {DPPM}")
        a("v_cvt_pk_bf16_f32 v44, v128, v129\nv_cvt_pk_bf16_f32 v45, v130, v131\ns_waitcnt lgkmcnt(0)")
        for b in range(4):
            for grp in range(2):
                d=128+4*grp; r=96+(grp*4+b)*2
                a(f"v_mfma_f32_4x4x4_16b_bf16 v[{d}:{d+3}], v[44:45], v[{r}:{r+1}], {'0' if b==0 else f'v[{d}:{d+3}]'} cbsz:4 abid:{4*b}")
        a(f"""s_add_u32 s30, s48, {P1_O}
        buffer_store_dword v128, v16, s[56:59], s30 offen{sc}
        buffer_store_dword v132, v17, s[56:59], s30 offen{sc}""")
        s.st(3)
        Lskip=s.lab('Lskipffn'); Ln=s.lab('Lnr')
        a(f"""s_cmp_ge_u32 s27, 28
        s_cbranch_scc1 {Lskip}
        s_cmp_lg_u32 s28, 0
        s_cbranch_scc1 {Ln}""")
        s.reduce('s30','v13','s50')
        a(f"""s_lshl_b32 s50, s49, 1
        s_add_u32 s50, s50, {F32_O}
        buffer_store_dwordx2 v[44:45], v19, s[60:63], s49 offen sc1
        buffer_store_dwordx4 v[40:43], v23, s[60:63], s50 offen sc1
        {Ln}:""")
        s.st(4)
        Lw=s.lab('Lnw'); T=s.lab('Llt')
        a(f"""s_cmp_lg_u32 s46, 0
        s_cbranch_scc1 {Lw}
        {T}:
        ds_read_b128 v[40:43], v28 offset:48
        s_waitcnt lgkmcnt(0)
        v_max3_u32 v40, v40, v41, v42
        v_max_u32 v40, v40, v43
        v_cmp_eq_u32 vcc, -1, v40""")
        s.spin_tail(T)
        a(f"""v_lshrrev_b32 v36, 2, v3
        v_lshlrev_b32 v36, 4, v36
        v_and_b32 v37, 1, v3
        v_lshl_add_u32 v36, v37, 3, v36
        v_lshl_add_u32 v36, v4, 7, v36
        s_mul_i32 s30, s28, {KW}
        v_add_u32 v36, s30, v36
        v_lshlrev_b32 v37, 2, v2
        v_lshl_add_u32 v37, v1, 8, v37""")
        for i in range(4):
            for u in range(2):
                a(f"ds_read_b64_tr_b16 v[{80+4*i+2*u}:{81+4*i+2*u}], v36 offset:{W1_O+i*512+u*64}")
        a("s_waitcnt lgkmcnt(0)")
        for k in range(8):
            a(f"ds_read_b32 v{113+2*k}, v37 offset:{(k>>1)*KW+W2_O+(k&1)*896}")
        a("v_cmp_gt_u32 vcc, 2, v4")
        for r in range(92,96): a(f"v_cndmask_b32 v{r}, 0, v{r}, vcc")
        a("s_waitcnt lgkmcnt(0)")
        for k in range(8):
            a(f"v_lshlrev_b32 v{112+2*k}, 16, v{113+2*k}\nv_and_b32 v{113+2*k}, 0xffff0000, v{113+2*k}")
        s.colsum(80,'v32','v39')
        a(f"{Lw}:")
        s.st(5)
        s.xfront(80,None,'s49')
        s.st(6)
        s.xsum('v32'); s.xnorm('v39')
        a(f"""v_mul_f32 v42, {fbits(-LOG2E):#x}, v41
        v_exp_f32 v42, v42
        v_add_f32 v42, 1.0, v42
        v_rcp_f32 v42, v42
        v_mul_f32 v41, v41, v42""")
        for k in range(8):
            op='v_mul_f32_dpp' if k==0 else 'v_fmac_f32_dpp'
            a(f"{op} v44, v41, v{112+2*k} row_newbcast:{k} {DPPM}\n{op} v45, v41, v{113+2*k} row_newbcast:{k} {DPPM}")
        a(f"""s_add_u32 s30, s48, {P2_O}
        buffer_store_dwordx2 v[44:45], v18, s[56:59], s30 offen{sc}""")
        s.st(7)
        s.adv_acc()
        Ln=s.lab('Lnr')
        a(f"""s_cmp_lg_u32 s28, 0
        s_cbranch_scc1 {Ln}""")
        s.reduce('s30','v14','s50')
        a(f"""s_add_u32 s31, s49, 7168
        s_add_u32 s50, s50, 14336
        buffer_store_dwordx2 v[44:45], v19, s[60:63], s31 offen sc1
        buffer_store_dwordx4 v[40:43], v23, s[60:63], s50 offen sc1
        {Ln}:
        {Lskip}:""")
        s.st(8)
        Lfin=s.lab('Lfin')
        a(f"""s_add_u32 s49, s49, 7168
        s_cmp_lg_u32 s46, 0
        s_cbranch_scc1 {Lfin}""")
        s.xfront(64,None,'s49')
        s.st(9)
        s.xsum('v33'); s.xnorm('v38')
        Ln=s.lab('Lq1')
        a(f"""v_mov_b32_dpp v42, v41 quad_perm:[1,0,3,2] {DPPM}
        s_mov_b32 s30, {IT_S+Q1_O}
        v_cvt_pk_bf16_f32 v42, v41, v42
        s_cmp_lg_u32 s28, 0
        s_cbranch_scc1 {Ln}
        buffer_store_dword v42, v24, s[56:59], s30 offen{sc}
        {Ln}:""")
        s.st(10)
        s.adv_acc()
        T=s.lab('Lq1p')
        a(f"""{T}:
        buffer_load_dwordx4 v[40:43], v12, s[56:59], s30 offen sc1
        s_waitcnt vmcnt(0)
        v_max3_u32 v45, v40, v41, v42
        v_max_u32 v45, v45, v43
        v_cmp_eq_u32 vcc, -1, v45""")
        s.spin_tail(T)
        a(f"""v_mov_b32 v44, {1 if tag=='f' else 2}
        ds_write_b128 v26, v[40:43]
        ds_write_b32 v28, v44 offset:4""")
        s.st(11)
        s.dump(192,12,0)
        a(f"""s_mov_b32 s46, 1
        s_mov_b32 s48, {IT_S}
        s_add_u32 s49, s49, 7168
        s_branch L_loop_{tag}
        {Lfin}:""")
        Le=s.lab('Lend')
        a(f"""s_cmp_lg_u32 s28, 0
        s_cbranch_scc1 L_end
        s_cmp_lg_u32 s26, 0
        s_cbranch_scc1 {Le}
        s_cmp_ge_u32 s27, 28
        s_cbranch_scc1 {Le}""")
        s.reduce(None,None,'s50',final=True)
        a(f"""s_mov_b32 s52, s20
        s_mov_b32 s53, s21
        s_mov_b32 s54, 896
        s_mov_b32 s55, 0x20000
        buffer_store_dwordx2 v[44:45], v27, s[52:55], 0 offen
        {Le}:""")
        s.st(9)
        s.dump(256,10,0)
        a("s_endpgm")

HEADER=open('cdna_kernels/'+KN+'.s.ref').read().split('; Override launch')[0]
def make(path, **kw):
    g=G(**kw); body=g.build()
    open(path,'w').write(wrap(body,256,512,LDS_TOTAL,header=HEADER))
    build(path, path[:-2]+'.co')
if __name__=='__main__':
    make('k_dev.s', stamps=True)
    make('k_rel.s')
    make('k_slow.s', force_slow=True)
    make('k_alt.s', altmap=True)
    print('ok', SMEND)
```
